```python
import torch

def _softmax(x, axis=-1):
    return torch.softmax(x, dim=axis)
def _gelu(x):
    return torch.nn.functional.gelu(x, approximate="tanh")
def _silu(x):
    return torch.nn.functional.silu(x)
def _sigmoid(x):
    return torch.sigmoid(x)
def _layernorm(x, axis=-1, eps=1e-5):
    m = x.mean(dim=axis, keepdim=True)
    v = x.var(dim=axis, keepdim=True, unbiased=False)
    return (x - m) / torch.sqrt(v + eps)
def _scatter_add(tgt, idx, src, axis=0):
    return tgt.clone().index_add_(axis, idx, src)
def _segment_sum(src, seg, n):
    out = torch.zeros((n,) + src.shape[1:], dtype=src.dtype)
    return out.index_add_(0, seg, src)
def _pad(x, pw):
    flat = tuple(v for pair in reversed(pw) for v in pair)
    return torch.nn.functional.pad(x, flat)

kernel_name = 'parallel_sum__mha_block_cached__glu_gated_glu__decode'

def setup_inputs():

    _w = (lambda a: (lambda t: t.to(torch.bfloat16) if t.is_floating_point() else t)(torch.as_tensor(a)))
    def _A_setup():
        B, Sq, D = 1, 1, 1024
        H, Sk, Dh = 32, 65536, 128
        return {
            "x": _w((lambda *s: torch.randn(*s, dtype=torch.bfloat16) * 0.05)(B, Sq, D)),
            "k_cache": _w((lambda *s: torch.randn(*s, dtype=torch.bfloat16) * 3.2)(B, H, Sk, Dh)),
            "v_cache": _w((lambda *s: torch.randn(*s, dtype=torch.bfloat16) * 1.6)(B, H, Sk, Dh)),
            "wq": _w((lambda *s: torch.randn(*s, dtype=torch.bfloat16) * 3.2)(D, H * Dh) * (D ** -0.5)),
            "wo": _w((lambda *s: torch.randn(*s, dtype=torch.bfloat16) * 1.6)(H * Dh, D) * ((H * Dh) ** -0.5)),
        }
    _A_in = _A_setup()

    def _B_setup():
        B, S, D, F = 1, 1, 1024, 3584
        return {
            "x": _w((lambda *s: torch.randn(*s, dtype=torch.bfloat16) * 0.05)(B, S, D)),
            "w_gate": _w((lambda *s: torch.randn(*s, dtype=torch.bfloat16) * 0.05)(D, F)),
            "w_up": _w((lambda *s: torch.randn(*s, dtype=torch.bfloat16) * 0.05)(D, F)),
            "w_down": _w((lambda *s: torch.randn(*s, dtype=torch.bfloat16) * 0.05)(F, D)),
        }
    _B_in = _B_setup()

    return {
        "A_x": _A_in["x"],
        "A_k_cache": _A_in["k_cache"],
        "A_v_cache": _A_in["v_cache"],
        "A_wq": _A_in["wq"],
        "A_wo": _A_in["wo"],
        "B_x": _B_in["x"],
        "B_w_gate": _B_in["w_gate"],
        "B_w_up": _B_in["w_up"],
        "B_w_down": _B_in["w_down"],
    }

def reference(A_x, A_k_cache, A_v_cache, A_wq, A_wo, B_x, B_w_gate, B_w_up, B_w_down):
    def _A_ref(x, k_cache, v_cache, wq, wo):
        B, Sq, D = x.shape
        H, Dh = 32, 128
        q = (lambda x, *d: x.permute(*d))((x @ wq).reshape(B, Sq, H, Dh), 0, 2, 1, 3)
        scores = torch.einsum("bhqd,bhkd->bhqk", q, k_cache) * (Dh ** -0.5)
        p = _softmax(scores, axis=-1)
        o = torch.einsum("bhqk,bhkd->bhqd", p, v_cache)
        return (lambda x, *d: x.permute(*d))(o, 0, 2, 1, 3).reshape(B, Sq, H * Dh) @ wo

    def _B_ref(x, w_gate, w_up, w_down):
        g = torch.einsum("bsd,df->bsf", x, w_gate)
        u = torch.einsum("bsd,df->bsf", x, w_up)
        h = _sigmoid(g) * u
        return torch.einsum("bsf,fd->bsd", h, w_down)

    x = A_x
    xn = _layernorm(x, axis=-1)
    return x + _A_ref(xn, A_k_cache, A_v_cache, A_wq, A_wo) + _B_ref(xn, B_w_gate, B_w_up, B_w_down)
```

```python
import re

TRANS = ("v_exp_f32", "v_log_f32", "v_rcp_f32", "v_rsq_f32", "v_sqrt_f32", "v_sin_f32", "v_cos_f32")

def regs_of(tok):
    tok = tok.strip()
    tok = tok.lstrip("-")
    m = re.fullmatch(r"abs\((.*)\)", tok)
    if m: tok = m.group(1)
    m = re.fullmatch(r"\|(.*)\|", tok)
    if m: tok = m.group(1)
    m = re.fullmatch(r"([vsa])(\d+)", tok)
    if m: return {tok}
    m = re.fullmatch(r"([vsa])\[(\d+):(\d+)\]", tok)
    if m: return {f"{m.group(1)}{i}" for i in range(int(m.group(2)), int(m.group(3)) + 1)}
    if tok in ("vcc", "vcc_lo", "vcc_hi"): return {"vcc"}
    if tok in ("exec", "exec_lo", "exec_hi"): return {"exec"}
    if tok == "m0": return {"m0"}
    return set()

class Ins:
    def __init__(self, text):
        self.text = text
        t = text.split(";")[0].strip()
        parts = t.split(None, 1)
        self.op = parts[0]
        rest = parts[1] if len(parts) > 1 else ""
        ops, depth, cur = [], 0, ""
        for ch in rest:
            if ch == "[": depth += 1
            if ch == "]": depth -= 1
            if ch == "," and depth == 0:
                ops.append(cur); cur = ""
            else:
                cur += ch
        if cur.strip(): ops.append(cur)
        mods = ""
        if ops:
            last = ops[-1].strip().split(None, 1)
            ops[-1] = last[0]
            mods = last[1] if len(last) > 1 else ""
        self.ops = [o.strip() for o in ops]
        self.mods = mods
        op = self.op
        self.is_mfma = op.startswith("v_mfma")
        self.is_valu = op.startswith("v_") and not self.is_mfma
        self.is_vmem = op.startswith("buffer_") or op.startswith("global_")
        self.is_ds = op.startswith("ds_")
        self.is_salu = op.startswith("s_")
        self.is_dpp = "_dpp" in op
        self.is_trans = any(op.startswith(x) for x in TRANS)
        self.is_perml = op.startswith("v_permlane")
        self.is_rdlane = op.startswith("v_readlane") or op.startswith("v_readfirstlane")
        R = [regs_of(o) for o in self.ops]
        rd, wr = set(), set()
        self.srcC = set(); self.srcAB = set(); self.storedata = set()
        if self.is_mfma:
            wr = R[0]; self.srcAB = R[1] | R[2]; self.srcC = R[3]; rd = self.srcAB | self.srcC
        elif self.is_valu:
            if self.is_perml:
                rd = R[0] | R[1]; wr = R[0] | R[1]
            elif op.startswith("v_add_co") or op.startswith("v_addc_co") or op.startswith("v_sub_co"):
                wr = R[0] | R[1]
                for r in R[2:]: rd |= r
            else:
                wr = R[0]
                for r in R[1:]: rd |= r
                if op.startswith("v_fmac") or op.startswith("v_dot2c") or op.startswith("v_writelane") or self.is_dpp:
                    rd |= R[0]
        elif self.is_vmem:
            if "store" in op:
                for r in R: rd |= r
                d = R[0] if op.startswith("buffer_") else R[1]
                if "x3" in op or "x4" in op: self.storedata = d
            elif "atomic" in op:
                for r in R: rd |= r
                if "sc0" in mods: wr = R[0]
            else:
                if " lds" in " " + mods:
                    for r in R: rd |= r
                else:
                    wr = R[0]
                    for r in R[1:]: rd |= r
        elif self.is_ds:
            if op.startswith("ds_write") or (op.startswith("ds_add") and "rtn" not in op):
                for r in R: rd |= r
            else:
                wr = R[0]
                for r in R[1:]: rd |= r
        elif self.is_salu:
            if op.startswith("s_cmp") or op.startswith("s_cbranch") or op in ("s_waitcnt", "s_nop", "s_barrier", "s_branch", "s_sleep", "s_setprio", "s_endpgm", "s_setpc_b64"):
                for r in R: rd |= r
            else:
                wr = R[0] if R else set()
                for r in R[1:]: rd |= r
        self.rd, self.wr = rd, wr
        self.states = 1
        if op == "s_nop": self.states = int(self.ops[0], 0) + 1

def need(p, c):
    n = 0
    vw = {r for r in p.wr if r[0] in "va" and r != "vcc"}
    sw = {r for r in p.wr if r[0] == "s" or r == "vcc"}
    if p.is_valu:
        if c.is_dpp and vw & c.rd: n = max(n, 2)
        if c.is_mfma and vw & c.rd: n = max(n, 2)
        if p.is_trans and c.is_valu and vw & c.rd: n = max(n, 1)
        if c.is_rdlane and vw & c.rd: n = max(n, 1)
        if c.is_perml and vw & c.rd: n = max(n, 2)
        if sw:
            if c.is_valu and sw & c.rd: n = max(n, 4 if (c.is_rdlane or c.op.startswith("v_writelane")) else 2)
            if c.is_valu and "vcc" in sw and c.op.startswith("v_cndmask") and len(c.ops) == 3: n = max(n, 2)
            if c.is_vmem and sw & c.rd: n = max(n, 5)
            if c.is_salu and sw & c.rd: n = max(n, 1)
        if "exec" in p.wr: n = max(n, 5)
    if p.is_mfma:
        D = p.wr
        if c.is_mfma:
            if D & c.srcAB: n = max(n, 8)
            if D & c.srcC and D != c.srcC: n = max(n, 6)
            if D & c.wr and D != c.srcC: n = max(n, 8)
        elif (c.is_valu or c.is_vmem or c.is_ds) and D & (c.rd | c.wr): n = max(n, 8)
        if c.is_valu and p.srcC & c.wr: n = max(n, 3)
    if p.storedata and p.storedata & c.wr: n = max(n, 2)
    if p.is_salu and "m0" in p.wr and c.is_vmem and "lds" in c.mods: n = max(n, 1)
    return n

class Asm:
    def __init__(self):
        self.lines = []
        self.hist = []
        self.nops = 0
    def raw(self, s):
        self.lines.append(s)
    def label(self, name, fence=True):
        self.lines.append(f"{name}:")
    def fence(self):
        worst = 0; dist = 0
        for p in reversed(self.hist):
            w = 0
            if p.is_mfma: w = 8
            elif p.is_valu:
                w = 5 if any(r[0] == "s" or r in ("vcc", "exec") for r in p.wr) else 2
            elif p.storedata: w = 2
            worst = max(worst, w - dist)
            dist += p.states
            if dist >= 12: break
        if worst > 0: self(f"s_nop {worst-1}")
    def __call__(self, text):
        for t in text.split("\n"):
            t = t.strip()
            if not t: continue
            if t.startswith(";"):
                self.lines.append("  " + t); continue
            c = Ins(t)
            dist = 0; pad = 0
            for p in reversed(self.hist):
                pad = max(pad, need(p, c) - dist)
                dist += p.states
                if dist >= 12: break
            if pad > 0:
                nop = Ins(f"s_nop {pad-1}")
                self.lines.append(f"  s_nop {pad-1}")
                self.hist.append(nop); self.nops += 1
            self.lines.append("  " + t)
            self.hist.append(c)
            self.hist = self.hist[-24:]
    def text(self):
        return "\n".join(self.lines) + "\n"
```

```python
import sys
from asmlib import Asm
KN = "parallel_sum__mha_block_cached__glu_gated_glu__decode_kernel"
HEADER = open("parallel_sum__mha_block_cached__glu_gated_glu__decode.s.ref").read().split("; Override launch")[0]

WS_EPOCH = 0x0
WS_CTR = 0x1000
WS_QX, WS_GX, WS_UX, WS_OX, WS_ZB, WS_ZA = 0x10000, 0x50000, 0x90000, 0xD0000, 0x110000, 0x150000
WS_DIAG = 0x200000
WS_SIZE = 0x300000
LOG2E = 0x3fb8aa3b
SCALE = 0x3db504f3
EPS = 0x3727c5ac
OOB = 0x7ff00000
DPPALL = "row_mask:0xf bank_mask:0xf"

def gen(path, diag=False, kvf="nt", wf="nt", guf="nt", NH=3, spin=200000):
    a = Asm()
    NWAVE = NH + 4
    a.raw(HEADER.rstrip("\n"))
    a.raw(f"; @launch grid=(256,1,1) block=({NWAVE*64},1,1) lds=8192")
    a.raw('.amdgcn_target "amdgcn-amd-amdhsa--gfx950"')
    a.raw(".text"); a.raw(f".globl {KN}"); a.raw(".p2align 8"); a.raw(f".type {KN},@function"); a.raw(f"{KN}:")
    nst = [0]
    def stamp(i):
        if diag:
            a(f"s_memrealtime s[{82+2*i}:{83+2*i}]")
            a("s_waitcnt lgkmcnt(0)")
    def dump_stamps():
        if diag:
            a("s_getreg_b32 s58, hwreg(HW_REG_XCC_ID)")
            for i in range(8): a(f"v_mov_b32 v{100+i}, s{82+2*i}")
            a("v_mov_b32 v108, s58"); a("v_mov_b32 v109, s79"); a("v_mov_b32 v110, 0"); a("v_mov_b32 v111, 0")
            a("s_lshl_b32 s58, s2, 3"); a("s_add_u32 s58, s58, s3"); a("s_lshl_b32 s58, s58, 6"); a(f"s_add_u32 s58, s58, {WS_DIAG}")
            a("s_mov_b64 exec, 1")
            a("buffer_store_dwordx4 v[100:103], off, s[28:31], s58")
            a("buffer_store_dwordx4 v[104:107], off, s[28:31], s58 offset:16")
            a("buffer_store_dwordx4 v[108:111], off, s[28:31], s58 offset:32")
    def allreduce(op, x, t):
        for r in (8, 4, 2, 1):
            a(f"{op}_dpp {x}, {x}, {x} row_ror:{r} {DPPALL}")
        a(f"v_mov_b32 {t}, {x}"); a(f"v_permlane16_swap_b32 {x}, {t}"); a(f"{op} {x}, {x}, {t}")
        a(f"v_mov_b32 {t}, {x}"); a(f"v_permlane32_swap_b32 {x}, {t}"); a(f"{op} {x}, {x}, {t}")
    def bf16r(d, s):
        a(f"v_cvt_pk_bf16_f32 {d}, {s}, {s}"); a(f"v_lshlrev_b32 {d}, 16, {d}")
    def call(lbl):
        a.fence(); a(f"s_call_b64 s[80:81], {lbl}")
    def ret():
        a.fence(); a("s_setpc_b64 s[80:81]")

    a("s_cmp_ge_u32 s2, 256"); a("s_cbranch_scc1 L_end")
    a("s_load_dwordx16 s[4:19], s[0:1], 0")
    a("s_load_dwordx8 s[20:27], s[0:1], 64")
    if diag:
        for i in range(8): a(f"s_mov_b32 s{82+2*i}, 0")
        a("s_mov_b32 s79, 0")
    a("v_lshrrev_b32 v1, 6, v0")
    a("v_and_b32 v0, 63, v0")
    a("v_readfirstlane_b32 s3, v1")
    a("v_and_b32 v1, 15, v0")
    a("v_lshrrev_b32 v2, 4, v0")
    a("v_lshlrev_b32 v3, 4, v0")
    a("s_lshr_b32 s48, s2, 3")
    a("s_and_b32 s49, s2, 7")
    a("s_mov_b32 s52, 0xaaaaaaaa"); a("s_mov_b32 s53, 0xaaaaaaaa")
    a("s_mov_b32 s54, 0xcccccccc"); a("s_mov_b32 s55, 0xcccccccc")
    a("s_mov_b32 s56, 0xff00ff00"); a("s_mov_b32 s57, 0xff00ff00")
    a("s_mov_b32 s31, 0x20000"); a("s_mov_b32 s35, 0x20000"); a("s_mov_b32 s39, 0x20000"); a("s_mov_b32 s43, 0x20000"); a("s_mov_b32 s47, 0x20000")
    a(f"s_mov_b32 s30, {WS_SIZE}")
    a("s_waitcnt lgkmcnt(0)")
    stamp(0)
    a("s_mov_b32 s28, s26"); a("s_mov_b32 s29, s27")
    a(f"s_cmp_ge_u32 s3, {NH}"); a("s_cbranch_scc1 L_stream")

    a("s_setprio 3")
    a("s_mov_b32 s32, s4"); a("s_mov_b32 s33, s5"); a("s_mov_b32 s34, 2048")
    a("s_lshl_b32 s60, s2, 10")
    a("s_cmp_eq_u32 s3, 0"); a("s_cbranch_scc0 L_gu_setup")
    a("v_mov_b32 v4, 0"); a("v_mov_b32 v5, 0"); a("v_mov_b32 v6, 0"); a("v_mov_b32 v7, 0")
    a(f"s_add_u32 s58, s60, {WS_OX}")
    a("buffer_store_dwordx4 v[4:7], v3, s[28:31], s58 offen sc1")
    a("s_cmp_eq_u32 s49, 0"); a("s_cbranch_scc0 L_q_noctr")
    a("s_lshl_b32 s58, s48, 8"); a(f"s_add_u32 s58, s58, {WS_CTR}")
    a("buffer_store_dword v4, off, s[28:31], s58 sc1")
    a.label("L_q_noctr")
    a("s_mov_b32 s36, s10"); a("s_mov_b32 s37, s11"); a(f"s_mov_b32 s38, {1024*8192}")
    a("s_mov_b32 s61, 8192")
    a("s_lshl_b32 s62, s48, 8")
    a("s_mov_b32 s63, 16")
    a(f"s_add_u32 s64, s60, {WS_QX}")
    a("s_branch L_h_common")
    a.label("L_gu_setup")
    a("s_setprio 2")
    a("s_cmp_eq_u32 s3, 1")
    a("s_cselect_b32 s36, s16, s18"); a("s_cselect_b32 s37, s17, s19"); a(f"s_mov_b32 s38, {1024*7168}")
    a(f"s_cselect_b32 s64, {WS_GX}, {WS_UX}") if False else None
    a(f"s_mov_b32 s58, {WS_GX}"); a(f"s_mov_b32 s59, {WS_UX}"); a("s_cselect_b32 s64, s58, s59")
    a("s_add_u32 s64, s64, s60")
    a("s_mov_b32 s61, 7168")
    a("s_mul_i32 s62, s48, 224")
    a("s_mov_b32 s63, 14")
    a.label("L_h_common")
    a("v_lshlrev_b32 v14, 5, v0")
    a("s_lshl_b32 s58, s49, 8")
    a("v_lshlrev_b32 v15, 2, v0")
    a("s_nop 0")
    a("buffer_load_dwordx4 v[4:7], v14, s[32:35], 0 offen")
    a("buffer_load_dwordx4 v[8:11], v14, s[32:35], 0 offen offset:16")
    a("buffer_load_dword v12, v15, s[32:35], s58 offen")
    a(f"buffer_load_dword v13, off, s[28:31], 0 sc1")
    a("s_lshl_b32 s58, s61, 5")
    a("v_mul_lo_u32 v14, v2, s58")
    a("v_lshl_add_u32 v14, v1, 4, v14")
    a("v_cmp_gt_u32 vcc, s63, v1")
    a(f"v_mov_b32 v15, {OOB}")
    a("v_cndmask_b32 v14, v15, v14, vcc")
    a("s_lshl_b32 s58, s49, 7"); a("s_mul_i32 s58, s58, s61"); a("s_add_u32 s58, s58, s62")
    for i in range(32):
        a(f"buffer_load_dwordx4 v[{128+4*i}:{131+4*i}], v14, s[36:39], s58 offen {wf}")
        if i < 31: a("s_add_u32 s58, s58, s61")
    a("s_cmp_eq_u32 s3, 0"); a("s_cbranch_scc1 L_h_nobar")
    a("s_barrier")
    a.label("L_h_nobar")
    a("v_mov_b32 v41, 0x0c0c0c0c")
    a("v_mov_b32 v42, 0x0c0c0100"); a("v_mov_b32 v43, 0x01000c0c"); a("v_cndmask_b32 v42, v42, v43, s[52:53]")
    a("v_mov_b32 v43, 0x0c0c0302"); a("v_mov_b32 v44, 0x03020c0c"); a("v_cndmask_b32 v43, v43, v44, s[52:53]")
    for r in range(4):
        a(f"s_mov_b32 s58, {0x03030303 << (2*r)}"); a("s_mov_b32 s59, s58")
        a(f"v_cndmask_b32 v{32+r}, v41, v42, s[58:59]")
        a(f"v_cndmask_b32 v{36+r}, v41, v43, s[58:59]")
    a("s_waitcnt vmcnt(32)")
    stamp(1)
    a("v_add_u32 v59, 1, v13"); a("v_or_b32 v59, 0x80000000, v59")
    a("s_mov_b32 s58, 0x9e3779b1"); a("v_mul_lo_u32 v58, v59, s58"); a("v_not_b32 v58, v58")
    a("v_mov_b32 v63, v59")
    for i in range(8):
        a(f"v_lshlrev_b32 v{16+2*i}, 16, v{4+i}"); a(f"v_and_b32 v{17+2*i}, 0xffff0000, v{4+i}")
    for i in range(8): a(f"v_add_f32 v{4+i}, v{16+2*i}, v{17+2*i}")
    for i in range(4): a(f"v_add_f32 v{4+i}, v{4+i}, v{8+i}")
    a("v_add_f32 v4, v4, v5"); a("v_add_f32 v6, v6, v7"); a("v_add_f32 v4, v4, v6")
    allreduce("v_add_f32", "v4", "v5")
    a("v_mul_f32 v4, 0x3a800000, v4")
    for i in range(16): a(f"v_sub_f32 v{16+i}, v{16+i}, v4")
    for i in range(4): a(f"v_mul_f32 v{6+i}, v{16+i}, v{16+i}")
    for i in range(4, 16): a(f"v_fmac_f32 v{6+(i%4)}, v{16+i}, v{16+i}")
    a("v_add_f32 v6, v6, v7"); a("v_add_f32 v8, v8, v9"); a("v_add_f32 v6, v6, v8")
    allreduce("v_add_f32", "v6", "v5")
    a("v_mul_f32 v6, 0x3a800000, v6")
    bf16r("v4", "v4"); bf16r("v6", "v6")
    a(f"v_add_f32 v6, {EPS}, v6"); bf16r("v6", "v6")
    a("v_sqrt_f32 v6, v6"); bf16r("v6", "v6"); a("v_rcp_f32 v6, v6")
    a("v_lshlrev_b32 v8, 16, v12"); a("v_and_b32 v9, 0xffff0000, v12")
    a("v_sub_f32 v8, v8, v4"); a("v_sub_f32 v9, v9, v4"); a("v_cvt_pk_bf16_f32 v8, v8, v9")
    a("v_and_b32 v9, 0xffff0000, v8"); a("v_lshlrev_b32 v8, 16, v8")
    a("v_mul_f32 v8, v8, v6"); a("v_mul_f32 v9, v9, v6"); a("v_cvt_pk_bf16_f32 v40, v8, v9")
    stamp(2)
    call("F_chain")
    stamp(3)
    a("s_cmp_eq_u32 s3, 2"); a("s_cbranch_scc1 L_fin")
    a("v_lshlrev_b32 v14, 16, v2"); a("v_lshl_add_u32 v14, v1, 4, v14")
    a("s_lshl_b32 s65, s48, 13")
    a("v_mov_b32 v99, -1")
    a("s_cmp_eq_u32 s3, 1"); a("s_cbranch_scc1 L_gwave")

    a(f"s_add_u32 s66, s65, {WS_QX}")
    call("F_gather8")
    stamp(4)
    call("F_sum8")
    a("v_cvt_pk_bf16_f32 v96, v96, v97")
    a("v_and_b32 v97, 8, v1"); a("v_add_u32 v97, v97, v1"); a("v_lshl_add_u32 v97, v2, 5, v97"); a("v_lshlrev_b32 v97, 1, v97")
    a("ds_write_b16 v97, v96"); a("ds_write_b16_d16_hi v97, v96 offset:16")
    a("s_waitcnt lgkmcnt(0)")
    a("s_barrier")
    stamp(5)
    a("s_mov_b32 s36, s12"); a("s_mov_b32 s37, s13"); a(f"s_mov_b32 s38, {4096*2048}")
    a("v_mov_b32 v15, v14")
    a("s_lshl_b32 s67, s48, 18"); a("s_lshl_b32 s58, s49, 8"); a("s_add_u32 s67, s67, s58")
    call("F_loadw")
    a("v_and_b32 v100, 1, v0"); a("s_lshl_b32 s58, s48, 1"); a("v_add_u32 v100, s58, v100")
    a("v_lshrrev_b32 v101, 1, v0"); a("v_lshlrev_b32 v101, 10, v101"); a("v_lshl_add_u32 v101, v100, 4, v101")
    a("v_and_b32 v102, 15, v100"); a("v_and_b32 v103, 8, v100"); a("v_add_u32 v102, v102, v103")
    a("v_lshrrev_b32 v103, 4, v100"); a("v_lshl_add_u32 v102, v103, 5, v102")
    a("s_lshl_b32 s58, s49, 7"); a("v_add_u32 v102, s58, v102"); a("v_lshlrev_b32 v102, 1, v102")
    a("buffer_load_ushort v104, v102, s[32:35], 0 offen")
    a("buffer_load_ushort v105, v102, s[32:35], 0 offen offset:16")
    a("s_lshl_b32 s68, s49, 15")
    a(f"s_add_u32 s66, s68, {WS_ZB}")
    call("F_gather32")
    bf16r("v106", "v96"); bf16r("v107", "v97")
    a("v_lshlrev_b32 v104, 16, v104"); a("v_lshlrev_b32 v105, 16, v105")
    a("s_mov_b32 s44, s22"); a("s_mov_b32 s45, s23"); a("s_mov_b32 s46, 2048")
    a("v_mov_b32 v99, 0")
    a(f"s_add_u32 s66, s65, {WS_OX}")
    a(f"s_add_u32 s69, s60, {WS_OX}")
    a("s_lshl_b32 s64, s48, 10"); a("s_add_u32 s64, s64, s68"); a(f"s_add_u32 s64, s64, {WS_ZA}")
    a("s_barrier")
    stamp(6)
    for w in range(4): a(f"ds_read_b128 v[{64+4*w}:{67+4*w}], v3 offset:{1024+1024*w}")
    a("s_waitcnt lgkmcnt(0)")
    a("v_max_f32 v80, v67, v71"); a("v_max3_f32 v80, v75, v79, v80")
    for w in range(4):
        a(f"v_sub_f32 v{81+w}, v{67+4*w}, v80")
    for w in range(4): a(f"v_mul_f32 v{81+w}, {LOG2E}, v{81+w}")
    for w in range(4): a(f"v_exp_f32 v{81+w}, v{81+w}")
    a("v_mul_f32 v60, v81, v64"); a("v_mul_f32 v61, v81, v65"); a("v_mul_f32 v62, v81, v66")
    for w in range(1, 4):
        a(f"v_fmac_f32 v60, v{81+w}, v{64+4*w}"); a(f"v_fmac_f32 v61, v{81+w}, v{65+4*w}"); a(f"v_fmac_f32 v62, v{81+w}, v{66+4*w}")
    a("v_rcp_f32 v85, v62"); a("v_log_f32 v62, v62")
    a("v_mul_f32 v60, v60, v85"); a("v_mul_f32 v61, v61, v85")
    a(f"v_mov_b32 v86, {LOG2E}"); a("v_fmac_f32 v62, v80, v86")
    a("buffer_store_dwordx4 v[60:63], v3, s[28:31], s69 offen sc1")
    call("F_gather8")
    a("v_max3_f32 v96, v66, v70, v74"); a("v_max3_f32 v97, v78, v82, v86"); a("v_max3_f32 v96, v90, v94, v96"); a("v_max_f32 v96, v96, v97")
    for i in range(8): a(f"v_sub_f32 v{66+4*i}, v{66+4*i}, v96")
    for i in range(8): a(f"v_exp_f32 v{66+4*i}, v{66+4*i}")
    a("v_mul_f32 v96, v66, v64"); a("v_mul_f32 v97, v66, v65"); a("v_mov_b32 v98, v66")
    for i in range(1, 8):
        a(f"v_fmac_f32 v96, v{66+4*i}, v{64+4*i}"); a(f"v_fmac_f32 v97, v{66+4*i}, v{65+4*i}"); a(f"v_add_f32 v98, v98, v{66+4*i}")
    a("v_rcp_f32 v98, v98")
    a("v_mul_f32 v96, v96, v98"); a("v_mul_f32 v97, v97, v98")
    a("v_cvt_pk_bf16_f32 v40, v96, v97")
    call("F_chain")
    a(f"s_add_u32 s66, s68, {WS_ZA}")
    call("F_gather32")
    bf16r("v96", "v96"); bf16r("v97", "v97")
    a("v_add_f32 v96, v104, v96"); a("v_add_f32 v97, v105, v97")
    bf16r("v96", "v96"); bf16r("v97", "v97")
    a("v_add_f32 v96, v96, v106"); a("v_add_f32 v97, v97, v107")
    a("v_cvt_pk_bf16_f32 v96, v96, v97")
    a("s_mov_b64 exec, 3")
    a("buffer_store_short v96, v102, s[44:47], 0 offen")
    a("buffer_store_short_d16_hi v96, v102, s[44:47], 0 offen offset:16")
    a("s_cmp_eq_u32 s2, 0"); a("s_cbranch_scc0 L_q_done")
    a("s_mov_b64 exec, 1")
    a("buffer_store_dword v59, off, s[28:31], 0 sc1")
    a.label("L_q_done")
    a("s_mov_b64 exec, -1")
    stamp(7)
    a("s_branch L_fin")

    a.label("L_gwave")
    a("s_mov_b32 s36, s20"); a("s_mov_b32 s37, s21"); a(f"s_mov_b32 s38, {3584*2048}")
    a("v_cmp_gt_u32 vcc, 3, v2"); a(f"v_mov_b32 v15, {OOB}"); a("v_cndmask_b32 v15, v15, v14, vcc")
    a(f"s_mul_i32 s67, s48, {112*2048}"); a("s_lshl_b32 s58, s49, 8"); a("s_add_u32 s67, s67, s58")
    call("F_loadw")
    a(f"s_add_u32 s66, s65, {WS_GX}")
    call("F_gather8"); call("F_sum8")
    bf16r("v100", "v96"); bf16r("v101", "v97")
    a(f"s_add_u32 s66, s65, {WS_UX}")
    call("F_gather8"); call("F_sum8")
    bf16r("v96", "v96"); bf16r("v97", "v97")
    for r in ("v100", "v101"):
        a(f"v_mul_f32 {r}, 0xbfb8aa3b, {r}"); a(f"v_exp_f32 {r}, {r}"); a(f"v_add_f32 {r}, 1.0, {r}"); a(f"v_rcp_f32 {r}, {r}")
        bf16r(r, r)
    a("v_mul_f32 v96, v96, v100"); a("v_mul_f32 v97, v97, v101")
    a("v_cvt_pk_bf16_f32 v40, v96, v97")
    a("s_lshl_b32 s64, s48, 10"); a("s_lshl_b32 s58, s49, 15"); a("s_add_u32 s64, s64, s58"); a(f"s_add_u32 s64, s64, {WS_ZB}")
    stamp(4)
    call("F_chain")
    stamp(5)
    a("s_branch L_fin")

    a.label("F_chain")
    for i in range(32):
        b = 44 + 4 * (i & 1)
        if i % 2 == 0: a(f"v_mov_b32_dpp v41, v40 row_newbcast:{i>>1} {DPPALL}")
        for r in range(4): a(f"v_perm_b32 v{b+r}, v41, v41, v{32+4*(i&1)+r}")
        a(f"s_waitcnt vmcnt({31-i})")
        a(f"v_mfma_f32_16x16x32_bf16 v[52:55], v[{128+4*i}:{131+4*i}], v[{b}:{b+3}], {'0' if i == 0 else 'v[52:55]'}")
    a("v_cndmask_b32 v56, v52, v54, s[56:57]"); a("v_cndmask_b32 v57, v53, v55, s[56:57]")
    a("buffer_store_dwordx4 v[56:59], v3, s[28:31], s64 offen sc1")
    ret()
    a.label("F_loadw")
    for i in range(32):
        m = i >> 1
        rho = 16 * (m >> 3) + (m & 7) + 8 * (i & 1)
        a(f"s_add_u32 s58, s67, {rho*2048}")
        a(f"buffer_load_dwordx4 v[{128+4*i}:{131+4*i}], {'v14' if i < 16 else 'v15'}, s[36:39], s58 offen {wf}")
    ret()
    a.label("F_gather8")
    a(f"s_mov_b32 s70, {spin}")
    a("s_add_u32 s71, s66, 4096")
    a.label("L_g8")
    for i in range(8):
        a(f"buffer_load_dwordx4 v[{64+4*i}:{67+4*i}], v3, s[28:31], {'s66' if i < 4 else 's71'} offen offset:{(i%4)*1024} sc1")
    a("s_waitcnt vmcnt(0)")
    a("v_xor_b32 v96, v67, v59"); a("v_xor_b32 v97, v66, v58")
    for i in range(1, 8):
        a(f"v_xor_b32 v98, v{67+4*i}, v59"); a("v_or_b32 v96, v96, v98")
        a(f"v_xor_b32 v98, v{66+4*i}, v58"); a("v_or_b32 v97, v97, v98")
    a("v_and_or_b32 v96, v97, v99, v96")
    a("v_cmp_ne_u32 vcc, 0, v96")
    a("s_cbranch_vccz L_g8_done")
    a("s_sub_u32 s70, s70, 1"); a("s_cmp_eq_u32 s70, 0"); a("s_cbranch_scc1 L_g8_done")
    a("s_sleep 1")
    a("s_branch L_g8")
    a.label("L_g8_done")
    ret()
    a.label("F_sum8")
    a("v_add_f32 v96, v64, v68"); a("v_add_f32 v97, v65, v69")
    for i in range(2, 8):
        a(f"v_add_f32 v96, v96, v{64+4*i}"); a(f"v_add_f32 v97, v97, v{65+4*i}")
    ret()
    a.label("F_gather32")
    a(f"s_mov_b32 s70, {spin}")
    a.label("L_g32")
    a("buffer_load_dwordx4 v[64:67], v101, s[28:31], s66 offen sc1")
    a("s_waitcnt vmcnt(0)")
    a("v_xor_b32 v96, v67, v59"); a("v_xor_b32 v97, v66, v58"); a("v_or_b32 v96, v96, v97")
    a("v_cmp_ne_u32 vcc, 0, v96")
    a("s_cbranch_vccz L_g32_done")
    a("s_sub_u32 s70, s70, 1"); a("s_cmp_eq_u32 s70, 0"); a("s_cbranch_scc1 L_g32_done")
    a("s_sleep 1")
    a("s_branch L_g32")
    a.label("L_g32_done")
    a(f"v_add_f32_dpp v96, v64, v64 quad_perm:[2,3,0,1] {DPPALL}"); a(f"v_add_f32_dpp v97, v65, v65 quad_perm:[2,3,0,1] {DPPALL}")
    for r in (4, 8):
        a(f"v_add_f32_dpp v96, v96, v96 row_ror:{r} {DPPALL}"); a(f"v_add_f32_dpp v97, v97, v97 row_ror:{r} {DPPALL}")
    for sw in ("16", "32"):
        a("v_mov_b32 v64, v96"); a("v_mov_b32 v65, v97")
        a(f"v_permlane{sw}_swap_b32 v96, v64"); a(f"v_permlane{sw}_swap_b32 v97, v65")
        a("v_add_f32 v96, v96, v64"); a("v_add_f32 v97, v97, v65")
    ret()

    a.label("L_stream")
    a("s_lshl_b32 s58, s48, 24")
    a("s_add_u32 s36, s6, s58"); a("s_addc_u32 s37, s7, 0"); a(f"s_mov_b32 s38, {1<<24}")
    a("s_add_u32 s40, s8, s58"); a("s_addc_u32 s41, s9, 0"); a(f"s_mov_b32 s42, {1<<24}")
    a("v_bfe_u32 v4, v0, 2, 2"); a("v_lshlrev_b32 v4, 8, v4"); a("v_lshl_add_u32 v4, v2, 6, v4")
    a("v_and_b32 v5, 3, v0"); a("v_lshl_add_u32 v4, v5, 4, v4")
    a(f"s_sub_u32 s72, s3, {NH}")
    a("s_lshl_b32 s73, s49, 2"); a("s_add_u32 s73, s73, s72")
    a("s_lshl_b32 s74, s73, 14")
    def issue(p, base):
        q = p % 16
        if q >= 4 and q % 4 == 0: a(f"s_add_u32 s75, {base}, {q*1024}")
        so = base if q < 4 else "s75"
        if p < 16: a(f"buffer_load_dwordx4 v[{128+4*p}:{131+4*p}], v4, s[36:39], {so} offen offset:{(q%4)*1024} {kvf}")
        else: a(f"buffer_load_dwordx4 v[{128+4*p}:{131+4*p}], v3, s[40:43], {so} offen offset:{(q%4)*1024} {kvf}")
    for p in range(32): issue(p, "s74")
    a("s_sub_u32 s58, s73, 32"); a("v_mov_b32 v6, s58")
    a("s_lshl_b32 s76, s48, 8"); a(f"s_add_u32 s76, s76, {WS_CTR}")
    a("v_mov_b32 v59, 0x0c0c0c0c")
    a("v_mov_b32 v60, 0x0c0c0100"); a("v_mov_b32 v61, 0x01000c0c"); a("v_cndmask_b32 v60, v60, v61, s[52:53]")
    a("v_mov_b32 v61, 0x0c0c0302"); a("v_mov_b32 v62, 0x03020c0c"); a("v_cndmask_b32 v61, v61, v62, s[52:53]")
    a("v_cndmask_b32 v60, v60, v61, s[56:57]")
    for r in range(4):
        a(f"s_mov_b32 s58, {0x03030303 << (2*r)}"); a("s_mov_b32 s59, s58")
        a(f"v_cndmask_b32 v{24+r}, v59, v60, s[58:59]")
    for r in range(4): a(f"v_mov_b32 v{44+r}, 0")
    a("v_mov_b32 v58, 0"); a("v_mov_b32 v7, 0xff800000")
    a("v_lshlrev_b32 v59, 6, v2"); a("v_lshl_add_u32 v59, v5, 4, v59")
    stamp(1)
    a("s_barrier")
    a("ds_read_b128 v[60:63], v59")
    a("s_waitcnt lgkmcnt(0)")
    stamp(2)
    for t in range(4):
        a(f"s_mov_b32 s58, {0x000f000f << (4*t)}"); a("s_mov_b32 s59, s58")
        for r in range(4): a(f"v_cndmask_b32 v{8+4*t+r}, 0, v{60+r}, s[58:59]")
    a.fence()

    def kpart(last):
        for p in range(16):
            u, t = p >> 2, p & 3
            a(f"s_waitcnt vmcnt({31-p if last else 32})")
            a(f"v_mfma_f32_16x16x32_bf16 v[{28+4*u}:{31+4*u}], v[{128+4*p}:{131+4*p}], v[{8+4*t}:{11+4*t}], {'0' if t == 0 else f'v[{28+4*u}:{31+4*u}]'}")
            if not last: issue(p, "s77")
    def softmax(tag):
        D = lambda u, r: f"v{28+4*u+r}"
        for (x, y, e, f, g) in ((0, 1, 59, 60, 63), (2, 3, 61, 62, 64)):
            a(f"v_cndmask_b32 v65, {D(x,0)}, {D(y,1)}, s[52:53]"); a(f"v_cndmask_b32 v66, {D(x,2)}, {D(y,3)}, s[52:53]")
            a(f"v_cndmask_b32 v67, {D(y,0)}, {D(x,1)}, s[52:53]"); a(f"v_cndmask_b32 v68, {D(y,2)}, {D(x,3)}, s[52:53]")
            a(f"v_cndmask_b32 v{f}, v67, v68, s[54:55]")
            a(f"v_cndmask_b32 v{e}, v65, v66, s[54:55]")
            a(f"v_add_f32_dpp v{g}, v{f}, v{e} quad_perm:[1,0,3,2] {DPPALL}")
        a("v_cndmask_b32 v60, v64, v63, s[54:55]")
        a("v_cndmask_b32 v59, v63, v64, s[54:55]")
        a(f"v_add_f32_dpp v56, v60, v59 quad_perm:[2,3,0,1] {DPPALL}")
        bf16r("v56", "v56"); a(f"v_mul_f32 v56, {SCALE}, v56"); bf16r("v56", "v56")
        a("v_cmp_gt_f32 vcc, v56, v7")
        a(f"s_cbranch_vccz L_nomax_{tag}")
        call("F_update")
        a.label(f"L_nomax_{tag}")
        a("v_sub_f32 v59, v56, v7"); a(f"v_mul_f32 v59, {LOG2E}, v59"); a("v_exp_f32 v59, v59")
        a("v_cvt_pk_bf16_f32 v60, v59, v59"); a("v_add_f32 v58, v58, v59"); a("v_lshlrev_b32 v60, 16, v60")
        a("v_sub_f32 v61, v59, v60"); a("v_cvt_pk_bf16_f32 v57, v60, v61")
    def vpart(last):
        for p in range(16, 32):
            u, t = (p - 16) >> 2, (p - 16) & 3
            b = 48 + 4 * (p & 1)
            a(f"v_mov_b32_dpp v{59+(p&1)}, v57 row_newbcast:{4*t+u} {DPPALL}")
            for r in range(4): a(f"v_perm_b32 v{b+r}, v{59+(p&1)}, v{59+(p&1)}, v{24+r}")
            a(f"s_waitcnt vmcnt({31-p if last else 32})")
            a(f"v_mfma_f32_16x16x32_bf16 v[44:47], v[{128+4*p}:{131+4*p}], v[{b}:{b+3}], v[44:47]")
            if not last: issue(p, "s77")
    a.raw(".p2align 6")
    a.label("L_loop")
    a("s_waitcnt vmcnt(32)")
    a("v_readfirstlane_b32 s77, v6")
    if diag: a("s_add_u32 s79, s79, 1")
    a("s_add_u32 s77, s77, 64"); a("s_cmp_ge_u32 s77, 1024"); a("s_cbranch_scc1 L_last")
    a("s_lshl_b32 s77, s77, 14")
    a("s_mov_b64 exec, 1"); a("v_mov_b32 v6, 1")
    a("buffer_atomic_add v6, off, s[28:31], s76 sc0")
    a("s_mov_b64 exec, -1")
    kpart(False); softmax("a"); vpart(False)
    a("s_branch L_loop")
    a.label("L_last")
    stamp(3)
    kpart(True); softmax("b")
    allreduce("v_add_f32", "v58", "v62")
    vpart(True)
    for r in range(4): a(f"v_add_f32_dpp v{44+r}, v{44+r}, v{44+r} row_ror:8 {DPPALL}")
    a("v_cndmask_b32 v60, v44, v46, s[56:57]"); a("v_cndmask_b32 v61, v45, v47, s[56:57]")
    a("v_mov_b32 v62, v58"); a("v_mov_b32 v63, v7")
    a("s_lshl_b32 s58, s72, 10"); a("v_add_u32 v59, s58, v3")
    a("ds_write_b128 v59, v[60:63] offset:1024")
    a("s_waitcnt lgkmcnt(0)")
    stamp(4)
    a("s_barrier")
    a("s_branch L_fin")
    a.label("F_update")
    a("v_mov_b32 v59, v56")
    allreduce("v_max_f32", "v59", "v60")
    a("v_sub_f32 v60, v7, v59"); a(f"v_mul_f32 v60, {LOG2E}, v60"); a("v_exp_f32 v60, v60")
    a("v_mov_b32 v7, v59")
    for r in range(4): a(f"v_mul_f32 v{44+r}, v{44+r}, v60")
    a("v_mul_f32 v58, v58, v60")
    ret()

    a.label("L_fin")
    dump_stamps()
    a.label("L_end")
    a("s_endpgm")
    a.raw('.section .rodata,"a"'); a.raw(".p2align 6"); a.raw(f".amdhsa_kernel {KN}")
    a.raw("  .amdhsa_next_free_vgpr 256"); a.raw("  .amdhsa_next_free_sgpr 102"); a.raw("  .amdhsa_accum_offset 256")
    a.raw("  .amdhsa_group_segment_fixed_size 0"); a.raw("  .amdhsa_kernarg_size 96"); a.raw("  .amdhsa_user_sgpr_count 2")
    a.raw("  .amdhsa_user_sgpr_kernarg_segment_ptr 1"); a.raw("  .amdhsa_system_sgpr_workgroup_id_x 1"); a.raw(".end_amdhsa_kernel")
    open(path, "w").write(a.text())

if __name__ == "__main__":
    import build
    gen("k1.s"); build.build("k1.s")
    gen("k1d.s", diag=True); build.build("k1d.s")
    print("ok")
```
